```python
import torch

def _softmax(x, axis=-1):
    return torch.softmax(x, dim=axis)
def _gelu(x):
    return torch.nn.functional.gelu(x, approximate="tanh")
def _silu(x):
    return torch.nn.functional.silu(x)
def _sigmoid(x):
    return torch.sigmoid(x)
def _layernorm(x, axis=-1, eps=1e-5):
    m = x.mean(dim=axis, keepdim=True)
    v = x.var(dim=axis, keepdim=True, unbiased=False)
    return (x - m) / torch.sqrt(v + eps)
def _scatter_add(tgt, idx, src, axis=0):
    return tgt.clone().index_add_(axis, idx, src)
def _segment_sum(src, seg, n):
    out = torch.zeros((n,) + src.shape[1:], dtype=src.dtype)
    return out.index_add_(0, seg, src)
def _pad(x, pw):
    flat = tuple(v for pair in reversed(pw) for v in pair)
    return torch.nn.functional.pad(x, flat)

kernel_name = 'interleave_layers__ssm_conv_h3__linear_attn_block__prompt'

def setup_inputs():

    _w = (lambda a: (lambda t: t.to(torch.bfloat16) if t.is_floating_point() else t)(torch.as_tensor(a)))
    def _A_setup():
        B, S, D = 1, 2048, 1024
        ks = 4
        return {
            "q": _w((lambda *s: torch.randn(*s, dtype=torch.bfloat16) * 0.05)(B, S, D)),
            "k": _w((lambda *s: torch.randn(*s, dtype=torch.bfloat16) * 0.4)(B, S, D)),
            "v": _w((lambda *s: torch.randn(*s, dtype=torch.bfloat16) * 0.4)(B, S, D)),
            "shift_k": _w((lambda *s: torch.randn(*s, dtype=torch.bfloat16) * 0.4)(D, ks) * 0.5),
            "ssm_k": _w((lambda *s: torch.randn(*s, dtype=torch.bfloat16) * 0.4)(D, S) * (1.0 / S ** 0.5)),
            "ssm_D": _w((lambda *s: torch.randn(*s, dtype=torch.bfloat16) * 0.4)(D)),
        }
    _A_in = _A_setup()

    def _B_setup():
        B, S, D = 1, 2048, 1024
        return {
            "x": _w((lambda *s: torch.randn(*s, dtype=torch.bfloat16) * 0.05)(B, S, D)),
            "wqkv": _w((lambda *s: torch.randn(*s, dtype=torch.bfloat16) * 0.1)(D, 3 * D)),
            "wo": _w((lambda *s: torch.randn(*s, dtype=torch.bfloat16) * 0.05)(D, D)),
        }
    _B_in = _B_setup()

    return {
        "A_q": _A_in["q"],
        "A_k": _A_in["k"],
        "A_v": _A_in["v"],
        "A_shift_k": _A_in["shift_k"],
        "A_ssm_k": _A_in["ssm_k"],
        "A_ssm_D": _A_in["ssm_D"],
        "B_x": _B_in["x"],
        "B_wqkv": _B_in["wqkv"],
        "B_wo": _B_in["wo"],
    }

def reference(A_q, A_k, A_v, A_shift_k, A_ssm_k, A_ssm_D, B_x, B_wqkv, B_wo):
    def _A_ref(q, k, v, shift_k, ssm_k, ssm_D):
        B, S, D = q.shape
        ks = shift_k.shape[-1]
        k_pad = _pad(k, ((0, 0), (ks - 1, 0), (0, 0)))
        k_shift = torch.zeros_like(k)
        for t in range(ks):
            k_shift = k_shift + k_pad[:, t:t + S, :] * shift_k[:, ks - 1 - t][None, None, :]
        kv = k_shift * v
        L = 2 * S
        kv_pad = _pad(kv, ((0, 0), (0, S), (0, 0)))
        kf_pad = _pad(ssm_k, ((0, 0), (0, S)))
        kv_f = (lambda x, axes=(-2,-1): torch.fft.rfft2(x.float(), dim=axes))(kv_pad[:, None, :, :], axes=(1, 2))
        kf_f = (lambda x, axes=(-2,-1): torch.fft.rfft2(x.float(), dim=axes))(kf_pad[:, None, :], axes=(1, 2))
        kf_f = (lambda x, *d: x.permute(*d))(kf_f, 1, 2, 0)
        y_f = kv_f * kf_f[None, :, :, :]
        y = (lambda x, s, axes=(-2,-1): torch.fft.irfft2(x, s=s, dim=axes).to(torch.bfloat16))(y_f, (1, L), axes=(1, 2))[:, 0, :S, :]
        y = y + kv * ssm_D[None, None, :]
        return q * y

    def _B_ref(x, wqkv, wo):
        B, S, D = x.shape
        H = 32; Dh = D // H
        qkv = (lambda x, *d: x.permute(*d))((x @ wqkv).reshape(B, S, 3, H, Dh), 2, 0, 3, 1, 4)
        q, k, v = qkv[0], qkv[1], qkv[2]
        phi = lambda t: torch.where(t > 0, t + 1, torch.exp(t)) + 1e-6
        pq, pk = phi(q), phi(k)
        kv = torch.einsum("bhsd,bhse->bhde", pk, v)
        z = torch.einsum("bhsd->bhd", pk)
        num = torch.einsum("bhqd,bhde->bhqe", pq, kv)
        den = torch.einsum("bhqd,bhd->bhq", pq, z)[..., None] + 1e-6
        o = num / den
        return (lambda x, *d: x.permute(*d))(o, 0, 2, 1, 3).reshape(B, S, D) @ wo

    x = A_q
    x = x + _A_ref(_layernorm(x, axis=-1), A_k, A_v, A_shift_k, A_ssm_k, A_ssm_D)
    x = x + _B_ref(_layernorm(x, axis=-1), B_wqkv, B_wo)
    x = x + _A_ref(_layernorm(x, axis=-1), A_k, A_v, A_shift_k, A_ssm_k, A_ssm_D)
    x = x + _B_ref(_layernorm(x, axis=-1), B_wqkv, B_wo)
    return x
```

```python
class Asm:
    def __init__(self):
        self.out = []
        self._lab = 0
    def __call__(self, s, c=None):
        self.out.append("    " + s + (("   ; " + c) if c else ""))
    def raw(self, s):
        self.out.append(s)
    def label(self, l):
        self.out.append(l + ":")
    def newlabel(self, p="L"):
        self._lab += 1
        return f"{p}_{self._lab}"
    def comment(self, s):
        self.out.append("    ; " + s)
    def text(self):
        return "\n".join(self.out) + "\n"

def v(i, n=1):
    return f"v{i}" if n == 1 else f"v[{i}:{i+n-1}]"
def s(i, n=1):
    return f"s{i}" if n == 1 else f"s[{i}:{i+n-1}]"
def a(i, n=1):
    return f"a{i}" if n == 1 else f"a[{i}:{i+n-1}]"

def srd(A, dst, base_lo, nbytes, off=0):
    if off:
        A(f"s_add_u32 s{dst}, s{base_lo}, {hex(off)}")
        A(f"s_addc_u32 s{dst+1}, s{base_lo+1}, 0")
    else:
        A(f"s_mov_b32 s{dst}, s{base_lo}")
        A(f"s_mov_b32 s{dst+1}, s{base_lo+1}")
    A(f"s_mov_b32 s{dst+2}, {hex(nbytes)}")
    A(f"s_mov_b32 s{dst+3}, 0x20000")

def kernel_header(A, name):
    A.raw(".text")
    A.raw(f".globl {name}")
    A.raw(".p2align 8")
    A.raw(f".type {name},@function")
    A.label(name)

def kernel_desc(name, vgpr, sgpr=102, accum=None):
    if accum is None:
        accum = (vgpr + 3) // 4 * 4
    return f""".amdhsa_kernel {name}
  .amdhsa_next_free_vgpr {vgpr}
  .amdhsa_next_free_sgpr {sgpr}
  .amdhsa_accum_offset {accum}
  .amdhsa_group_segment_fixed_size 0
  .amdhsa_kernarg_size 96
  .amdhsa_user_sgpr_count 2
  .amdhsa_user_sgpr_kernarg_segment_ptr 1
  .amdhsa_system_sgpr_workgroup_id_x 1
.end_amdhsa_kernel
"""
```

```python
import sys
from asmlib import *

MB = 1 << 20
UR_OFF = 0
Y_OFF = 4 * MB
WQ_OFF = 8 * MB
WO_OFF = 14 * MB
X1_OFF = 16 * MB
X2_OFF = 20 * MB
X3_OFF = 24 * MB
XN_OFF = 28 * MB
PQ_OFF = 32 * MB
O_OFF = 36 * MB
KVP_OFF = 40 * MB
KVP_STRIDE = 4352
KVP_SIZE = 16 * 32 * KVP_STRIDE

KA_Q, KA_K, KA_V, KA_SK, KA_H, KA_D, KA_BX, KA_WQKV, KA_WO, KA_OUT, KA_DBG, KA_WS = [8 * i for i in range(12)]

PFX = "ilss"
STAMP = False
STAMP_OFF = 128 * MB
class Stamps:
    def __init__(self, A, kidx):
        self.A = A; self.n = 0; self.kidx = kidx
    def stamp(self, real=False):
        if not STAMP: return
        A = self.A
        r = 64 + 2 * self.n
        A(f"s_memrealtime s[{r}:{r+1}]" if real else f"s_memtime s[{r}:{r+1}]")
        A("s_waitcnt lgkmcnt(0)")
        self.n += 1
    def flush(self, ws_lo, wave_sgpr, vtmp, nwaves=8):
        if not STAMP: return
        A = self.A
        srd(A, 56, ws_lo, 1 << 20, STAMP_OFF + self.kidx * (1 << 20))
        A(f"s_lshl_b32 s60, s2, 3")
        A(f"s_add_u32 s60, s60, s{wave_sgpr}")
        A(f"s_lshl_b32 s60, s60, 7", "128 B per wave")
        A(f"v_mov_b32 v{vtmp}, s60")
        A("s_mov_b64 exec, 1")
        for i in range(self.n):
            A(f"v_mov_b32 v{vtmp+1}, s{64+2*i}")
            A(f"buffer_store_dword v{vtmp+1}, v{vtmp}, s[56:59], 0 offen offset:{4*i}")
        A("s_mov_b64 exec, -1")

def gen_k0(A):
    name = f"{PFX}_k0_kernel"
    kernel_header(A, name)
    A("s_cmp_ge_u32 s2, 256")
    A(f"s_cbranch_scc1 {name}_done")
    A(f"s_load_dwordx4 s[4:7], s[0:1], {KA_K}")
    A(f"s_load_dwordx2 s[8:9], s[0:1], {KA_SK}")
    A(f"s_load_dwordx2 s[10:11], s[0:1], {KA_WS}")
    A(f"s_load_dwordx4 s[32:35], s[0:1], {KA_WQKV}", "wqkv, wo")
    A("v_lshrrev_b32 v1, 6, v0")
    A("s_nop 0")
    A("v_readfirstlane_b32 s36, v1", "wave id")
    A("s_nop 3")
    A("s_cmp_ge_u32 s36, 4")
    A(f"s_cbranch_scc1 {name}_prep")
    A("s_and_b32 s28, s2, 15")
    A("s_lshl_b32 s28, s28, 7", "cg*128 bytes")
    A("s_lshr_b32 s29, s2, 4")
    A("s_lshl_b32 s29, s29, 7", "rg*128 rows")
    A("v_and_b32 v1, 7, v0")
    A("v_lshrrev_b32 v2, 3, v0")
    A("v_lshlrev_b32 v3, 2, v2")
    A("v_add_u32 v3, s29, v3", "s0")
    A("v_lshlrev_b32 v4, 4, v1")
    A("v_add_u32 v4, s28, v4", "dbyte")
    A("v_lshlrev_b32 v5, 11, v3")
    A("v_add_u32 v5, v5, v4", "row s0 offset")
    for r in range(7):
        dlt = (r - 3) * 2048
        A(f"v_add_u32 v{6+r}, {hex(dlt & 0xffffffff)}, v5")
    A("v_lshlrev_b32 v13, 2, v4", "shift_k byte offset")
    A("v_lshlrev_b32 v14, 11, v4")
    A("v_lshlrev_b32 v15, 1, v3")
    A("v_sub_u32 v15, 4088, v15")
    A("v_add_u32 v14, v14, v15")
    A("s_waitcnt lgkmcnt(0)")
    srd(A, 12, 4, 4 * MB)
    srd(A, 16, 6, 4 * MB)
    srd(A, 20, 8, 8192)
    srd(A, 24, 10, 4 * MB, UR_OFF)
    KR, VR, SR = 16, 44, 60
    for r in range(7):
        A(f"buffer_load_dwordx4 {v(KR+4*r,4)}, v{6+r}, s[12:15], 0 offen")
    for i in range(4):
        A(f"buffer_load_dwordx4 {v(SR+4*i,4)}, v13, s[20:23], 0 offen offset:{16*i}")
    for r in range(4):
        A(f"buffer_load_dwordx4 {v(VR+4*r,4)}, v{9+r}, s[16:19], 0 offen")
    KF, WF, VF, KS = 76, 132, 164, 196
    A("s_waitcnt vmcnt(8)")
    for r in range(7):
        for dw in range(4):
            A(f"v_lshlrev_b32 v{KF+8*r+2*dw}, 16, v{KR+4*r+dw}")
            A(f"v_and_b32 v{KF+8*r+2*dw+1}, 0xffff0000, v{KR+4*r+dw}")
    A("s_waitcnt vmcnt(4)")
    for c in range(8):
        A(f"v_lshlrev_b32 v{WF+0*8+c}, 16, v{SR+2*c}")
        A(f"v_and_b32 v{WF+1*8+c}, 0xffff0000, v{SR+2*c}")
        A(f"v_lshlrev_b32 v{WF+2*8+c}, 16, v{SR+2*c+1}")
        A(f"v_and_b32 v{WF+3*8+c}, 0xffff0000, v{SR+2*c+1}")
    for r in range(4):
        for cp in range(4):
            d = KS + 8 * r + 2 * cp
            A(f"v_pk_mul_f32 {v(d,2)}, {v(KF+8*(r+0)+2*cp,2)}, {v(WF+3*8+2*cp,2)}")
            A(f"v_pk_fma_f32 {v(d,2)}, {v(KF+8*(r+1)+2*cp,2)}, {v(WF+2*8+2*cp,2)}, {v(d,2)}")
            A(f"v_pk_fma_f32 {v(d,2)}, {v(KF+8*(r+2)+2*cp,2)}, {v(WF+1*8+2*cp,2)}, {v(d,2)}")
            A(f"v_pk_fma_f32 {v(d,2)}, {v(KF+8*(r+3)+2*cp,2)}, {v(WF+0*8+2*cp,2)}, {v(d,2)}")
    A("s_waitcnt vmcnt(0)")
    for r in range(4):
        for dw in range(4):
            A(f"v_lshlrev_b32 v{VF+8*r+2*dw}, 16, v{VR+4*r+dw}")
            A(f"v_and_b32 v{VF+8*r+2*dw+1}, 0xffff0000, v{VR+4*r+dw}")
    for r in range(4):
        for cp in range(4):
            d = KS + 8 * r + 2 * cp
            A(f"v_pk_mul_f32 {v(d,2)}, {v(d,2)}, {v(VF+8*r+2*cp,2)}")
    OUT = 16
    for c in range(8):
        A(f"v_cvt_pk_bf16_f32 v{OUT+2*c}, v{KS+8*3+c}, v{KS+8*2+c}")
        A(f"v_cvt_pk_bf16_f32 v{OUT+2*c+1}, v{KS+8*1+c}, v{KS+8*0+c}")
    for c in range(8):
        A(f"s_mov_b32 s30, {c*4096}")
        A(f"buffer_store_dwordx2 {v(OUT+2*c,2)}, v14, s[24:27], s30 offen")
    A("s_endpgm")
    A.label(f"{name}_prep")
    A("v_and_b32 v2, 63, v0", "lane")
    A("v_and_b32 v3, 15, v2", "nn")
    A("v_lshrrev_b32 v4, 4, v2", "g")
    A("s_sub_u32 s36, s36, 4")
    A("s_lshl_b32 s37, s2, 2")
    A("s_add_u32 s37, s37, s36", "task id")
    A("s_lshl_b32 s36, s36, 13", "wave LDS base")
    A("v_lshrrev_b32 v5, 1, v3")
    A("v_lshlrev_b32 v5, 10, v5")
    A("v_lshl_add_u32 v5, v4, 8, v5")
    A("v_and_b32 v6, 1, v3")
    A("v_lshl_add_u32 v5, v6, 7, v5")
    A("v_and_b32 v6, 7, v3")
    A("v_lshl_add_u32 v5, v6, 4, v5")
    A("v_add_u32 v5, s36, v5")
    A("v_lshlrev_b32 v7, 4, v2")
    A("v_bfe_u32 v6, v2, 3, 1")
    A("v_lshlrev_b32 v6, 4, v6")
    A("v_xor_b32 v6, v6, v7")
    A("v_add_u32 v6, s36, v6")
    A("s_waitcnt lgkmcnt(0)")
    A("s_cmp_ge_u32 s37, 768")
    A(f"s_cbranch_scc1 {name}_prep_wo")
    srd(A, 12, 32, 6 * MB)
    srd(A, 16, 10, 6 * MB, WQ_OFF)
    A("s_mul_hi_u32 s38, s37, 0x0aaaaaab", "id/24")
    A("s_mul_i32 s39, s38, 24")
    A("s_sub_u32 s39, s37, s39", "ng")
    A("s_mul_i32 s40, s38, 32*6144")
    A("s_lshl_b32 s41, s39, 8")
    A("s_add_u32 s40, s40, s41")
    A("v_mul_u32_u24 v8, 8*6144, v4")
    A("v_lshl_add_u32 v8, v3, 4, v8")
    A("v_add_u32 v8, s40, v8")
    PR = 16
    for r in range(8):
        A(f"s_mov_b32 s30, {r*6144}")
        A(f"buffer_load_dwordx4 {v(PR+4*r,4)}, v8, s[12:15], s30 offen")
    A("s_and_b32 s40, s39, 7")
    A("s_lshl_b32 s40, s40, 5")
    A("s_lshr_b32 s41, s38, 1")
    A("s_add_u32 s40, s40, s41")
    A("s_mul_i32 s40, s40, 24")
    A("s_lshr_b32 s41, s39, 3")
    A("s_lshl_b32 s41, s41, 2")
    A("s_add_u32 s40, s40, s41")
    A("s_and_b32 s41, s38, 1")
    A("s_add_u32 s40, s40, s41")
    A("s_lshl_b32 s40, s40, 10")
    for c in range(8):
        A(f"s_add_u32 s{44+c}, s40, {((c>>2)*16*24 + (((c>>1)&1)*6 + (c&1))*2)*1024}")
    A(f"s_branch {name}_prep_tr")
    A.label(f"{name}_prep_wo")
    srd(A, 12, 34, 2 * MB)
    srd(A, 16, 10, 2 * MB, WO_OFF)
    A("s_sub_u32 s37, s37, 768")
    A("s_lshr_b32 s38, s37, 3", "head")
    A("s_and_b32 s39, s37, 7", "ng")
    A("s_lshl_b32 s40, s38, 16")
    A("s_lshl_b32 s41, s39, 8")
    A("s_add_u32 s40, s40, s41")
    A("v_lshlrev_b32 v8, 13, v4")
    A("v_lshl_add_u32 v8, v3, 4, v8")
    A("v_add_u32 v8, s40, v8")
    for r in range(8):
        row = r if r < 4 else 12 + r
        A(f"s_mov_b32 s30, {row*2048}")
        A(f"buffer_load_dwordx4 {v(PR+4*r,4)}, v8, s[12:15], s30 offen")
    A("s_lshl_b32 s40, s39, 5")
    A("s_lshr_b32 s41, s38, 1")
    A("s_add_u32 s40, s40, s41")
    A("s_lshl_b32 s40, s40, 3")
    A("s_and_b32 s41, s38, 1")
    A("s_add_u32 s40, s40, s41")
    A("s_lshl_b32 s40, s40, 10")
    for c in range(8):
        A(f"s_add_u32 s{44+c}, s40, {((c>>2)*128 + (c&3)*2)*1024}")
    A.label(f"{name}_prep_tr")
    A("s_mov_b32 s30, 0x05040100")
    A("s_mov_b32 s31, 0x07060302")
    A("v_lshlrev_b32 v9, 4, v2", "lane*16")
    A("s_waitcnt vmcnt(0)")
    PO = 48
    for dw in range(4):
        for dwp in range(4):
            A(f"v_perm_b32 v{PO+(2*dw)*4+dwp}, v{PR+4*(2*dwp+1)+dw}, v{PR+4*(2*dwp)+dw}, s30")
            A(f"v_perm_b32 v{PO+(2*dw+1)*4+dwp}, v{PR+4*(2*dwp+1)+dw}, v{PR+4*(2*dwp)+dw}, s31")
    for i in range(8):
        A(f"v_xor_b32 v{80+i}, {i*16}, v5")
        A(f"ds_write_b128 v{80+i}, {v(PO+4*i,4)}")
    for q in range(4):
        A(f"v_xor_b32 v{88+q}, {q*32}, v6")
    A("s_waitcnt lgkmcnt(0)")
    for c in range(8):
        A(f"ds_read_b128 {v(PR+4*c,4)}, v{88+(c&3)} offset:{c*1024}")
    for c in range(8):
        A(f"s_waitcnt lgkmcnt({7-c})")
        A(f"buffer_store_dwordx4 {v(PR+4*c,4)}, v9, s[16:19], s{44+c} offen")
    A.label(f"{name}_done")
    A("s_endpgm")
    return [(name, 232, 64)], [f"; @launch kernel={name} grid=(256,1,1) block=(512,1,1) lds=32768"]

HC_BASE = [0, 260, 519, 778, 1037, 1296, 1556, 1815]
HC_BYTES = 33280
URL_BYTES = 4608
CW_BYTES = HC_BYTES + URL_BYTES
K1_LDS = 4 * CW_BYTES

def gen_k1(A):
    name = f"{PFX}_k1_kernel"
    kernel_header(A, name)
    A("s_cmp_ge_u32 s2, 256")
    A(f"s_cbranch_scc1 {name}_done")
    A(f"s_load_dwordx4 s[4:7], s[0:1], {KA_H}", "ssm_k, ssm_D")
    A(f"s_load_dwordx2 s[12:13], s[0:1], {KA_WS}")
    A("v_lshrrev_b32 v1, 6, v0")
    A("v_and_b32 v2, 63, v0", "lane")
    A("v_readfirstlane_b32 s14, v1", "wave id")
    A("s_nop 3")
    ST = Stamps(A, 1)
    ST.stamp(True); ST.stamp()
    A("s_and_b32 s15, s2, 7")
    A("s_lshl_b32 s15, s15, 5")
    A("s_lshr_b32 s16, s2, 3")
    A("s_add_u32 s15, s15, s16")
    A("s_lshl_b32 s15, s15, 2")
    A("s_add_u32 s15, s15, s14", "s15 = d")
    A("s_lshl_b32 s16, s15, 12", "d*4096")
    A(f"s_mul_i32 s17, s14, {CW_BYTES}", "wave LDS base")
    A("s_waitcnt lgkmcnt(0)")
    A("s_add_u32 s20, s4, s16")
    A("s_addc_u32 s21, s5, 0")
    A("s_mov_b32 s22, 4096")
    A("s_mov_b32 s23, 0x20000")
    A(f"s_add_u32 s24, s12, {hex(UR_OFF)}")
    A("s_addc_u32 s25, s13, 0")
    A("s_add_u32 s24, s24, s16")
    A("s_addc_u32 s25, s25, 0")
    A("s_mov_b32 s26, 4096")
    A("s_mov_b32 s27, 0x20000")
    srd(A, 28, 12, 4 * MB, Y_OFF)
    A("s_lshl_b32 s18, s15, 1")
    A("s_and_b32 s18, s18, 0xfffffffc")
    A("s_load_dword s19, s[6:7], s18")
    A("v_lshlrev_b32 v3, 4, v2", "lane*16")
    HW = 160
    for it in range(5):
        dlt = it * 1024 - 32
        A(f"v_add_u32 v4, {hex(dlt & 0xffffffff)}, v3")
        A(f"buffer_load_dwordx4 {v(HW+8*it,4)}, v4, s[20:23], 0 offen")
        A(f"v_add_u32 v4, {hex((dlt+16) & 0xffffffff)}, v3")
        A(f"buffer_load_dwordx4 {v(HW+8*it+4,4)}, v4, s[20:23], 0 offen")
    A(f"s_add_u32 s32, s17, {HC_BYTES}", "UR lds base")
    A("s_mov_b32 m0, s32")
    A("s_nop 0")
    for i in range(4):
        A(f"buffer_load_dwordx4 v3, s[24:27], 0 offen offset:{1024*i} lds")
    A("v_mov_b32 v8, 0")
    A("v_mov_b32 v9, 0")
    A("v_mov_b32 v10, 0")
    A("v_mov_b32 v11, 0")
    A("v_add_u32 v5, s32, v3", "UR lds base + lane*16")
    A("v_cmp_gt_u32 vcc, 32, v2")
    A("s_and_saveexec_b64 s[34:35], vcc")
    A("ds_write_b128 v5, v[8:11] offset:4096")
    A("s_mov_b64 exec, s[34:35]")
    A("v_add_u32 v6, s17, v3", "HC base + lane*16")
    T0 = 16
    for it in range(5):
        W = HW + 8 * it
        A(f"s_waitcnt vmcnt({4 + 2*(4-it)})")
        if it == 0: ST.stamp()
        if it == 4:
            A("v_cmp_gt_u32 vcc, 2, v2")
            A("s_and_saveexec_b64 s[34:35], vcc")
        for i in range(6):
            A(f"v_mov_b32 v{T0+i}, v{W+i+1}")
        for i in range(6):
            A(f"v_alignbit_b32 v{T0+6+i}, v{W+i+1}, v{W+i}, 16")
        for i in range(6):
            A(f"v_alignbit_b32 v{T0+12+i}, v{W+i+2}, v{W+i+1}, 16")
        srcs = {0: W, 4: W + 2, 2: T0, 6: T0 + 2, 1: T0 + 6, 5: T0 + 8, 3: T0 + 12, 7: T0 + 14}
        for c in range(8):
            A(f"ds_write_b128 v6, {v(srcs[c],4)} offset:{HC_BASE[c]*16 + it*1024}")
        if it == 4:
            A("s_mov_b64 exec, s[34:35]")
        else:
            A("s_nop 0")
    A("v_and_b32 v12, 15, v2", "r / i'")
    A("v_lshrrev_b32 v13, 4, v2", "g")
    A("v_add_u32 v14, 1, v12", "r+1")
    A("v_and_b32 v15, 7, v14", "c")
    A("v_lshrrev_b32 v14, 3, v14", "q")
    A("v_add_u32 v14, v14, v13", "g+q")
    A("v_mul_u32_u24 v7, 259, v15")
    A("v_add_u32 v7, v7, v14")
    A("v_cmp_le_u32 vcc, 1, v15")
    A("s_nop 1")
    A("v_addc_co_u32 v7, vcc, 0, v7, vcc")
    A("v_cmp_le_u32 vcc, 6, v15")
    A("s_nop 1")
    A("v_addc_co_u32 v7, vcc, 0, v7, vcc")
    A("v_lshlrev_b32 v7, 4, v7")
    A("v_add_u32 v7, s17, v7", "v7 = A frag lane base")
    A("v_lshlrev_b32 v8, 5, v12")
    A("v_lshlrev_b32 v9, 4, v13")
    A("v_sub_u32 v8, v9, v8")
    A("v_add_u32 v8, 480, v8")
    A("v_add_u32 v8, s32, v8", "v8 = B frag lane base")
    A("v_lshlrev_b32 v9, 5, v12")
    A("v_lshlrev_b32 v10, 3, v13")
    A("v_add_u32 v9, v9, v10")
    A("v_sub_u32 v9, 504, v9")
    A("v_add_u32 v9, s32, v9", "v9 = epilogue u base")
    A("v_lshlrev_b32 v10, 5, v12")
    A("v_lshl_add_u32 v10, v13, 3, v10")
    A("v_add_u32 v10, s17, v10", "v10 = staging write addr (t=0)")
    A("v_lshrrev_b32 v11, 3, v2", "line")
    A("v_bfe_u32 v14, v2, 1, 2", "c")
    A(f"s_mov_b32 s33, {CW_BYTES}")
    A("v_mul_lo_u32 v14, v14, s33")
    A("v_lshl_add_u32 v14, v11, 5, v14")
    A("v_and_b32 v15, 1, v2")
    A("v_lshl_add_u32 v14, v15, 4, v14")
    A("s_lshl_b32 s33, s14, 10", "w*32*32")
    A("v_add_u32 v14, s33, v14", "v14 = readback addr (it=0)")
    A("v_lshlrev_b32 v11, 15, v11")
    A("v_and_b32 v15, 7, v2")
    A("v_lshl_add_u32 v11, v15, 4, v11")
    A("s_lshr_b32 s33, s15, 2")
    A("s_lshl_b32 s33, s33, 7")
    A("s_lshl_b32 s38, s14, 20", "w*32*32768")
    A("s_add_u32 s33, s33, s38")
    A("v_add_u32 v11, s33, v11", "v11 = Y global offset (it=0)")
    ACC = 16
    FA = [48, 112]
    for i in range(32):
        A(f"v_mov_b32 v{ACC+i}, 0")
    A("s_waitcnt vmcnt(0) lgkmcnt(0)", "ur DMA landed, fills done (own wave only)")
    ST.stamp()
    def reads(rho, st):
        r = []
        base = FA[st]
        for a_ in range(8):
            r.append(f"ds_read_b128 {v(base+4*a_,4)}, v7 offset:{64*rho + 512*a_}")
            b_ = a_
            r.append(f"ds_read_b128 {v(base+32+4*b_,4)}, v8 offset:{3584 - 512*b_ + 64*rho}")
        return r
    def mfmas(st):
        base = FA[st]
        m = []
        pairs = [(a_, b_) for a_ in range(8) for b_ in range(8 - a_)]
        pairs.sort(key=lambda p: (max(p), p[0]))
        for a_, b_ in pairs:
            t = a_ + b_
            m.append(f"v_mfma_f32_16x16x32_bf16 {v(ACC+4*t,4)}, {v(base+4*a_,4)}, {v(base+32+4*b_,4)}, {v(ACC+4*t,4)}")
        return m
    for x in reads(0, 0):
        A(x)
    for rho in range(8):
        st = rho & 1
        A("s_waitcnt lgkmcnt(0)")
        m = mfmas(st)
        rd = reads(rho + 1, st ^ 1) if rho < 7 else []
        for i, x in enumerate(m):
            A(x)
            if i < len(rd):
                A(rd[i])
    ST.stamp()
    U = 48
    for t in range(8):
        A(f"ds_read_b64 {v(U+2*t,2)}, v9 offset:{3584-512*t}")
    A("s_waitcnt lgkmcnt(0)")
    A("s_and_b32 s36, s15, 1")
    A("s_lshl_b32 s36, s36, 4")
    A("s_lshr_b32 s19, s19, s36")
    A("s_lshl_b32 s19, s19, 16", "D as f32")
    A("s_nop 7")
    UF = 64
    for t in range(8):
        A(f"v_lshlrev_b32 v{UF+3}, 16, v{U+2*t}")
        A(f"v_and_b32 v{UF+2}, 0xffff0000, v{U+2*t}")
        A(f"v_lshlrev_b32 v{UF+1}, 16, v{U+2*t+1}")
        A(f"v_and_b32 v{UF+0}, 0xffff0000, v{U+2*t+1}")
        for i in range(4):
            A(f"v_fma_f32 v{ACC+4*t+i}, v{UF+i}, s19, v{ACC+4*t+i}")
        A(f"v_cvt_pk_bf16_f32 v{UF+8+2*t}, v{ACC+4*t}, v{ACC+4*t+1}")
        A(f"v_cvt_pk_bf16_f32 v{UF+8+2*t+1}, v{ACC+4*t+2}, v{ACC+4*t+3}")
        A(f"ds_write_b64 v10, {v(UF+8+2*t,2)} offset:{512*t}")
    A("s_waitcnt lgkmcnt(0)")
    A("s_barrier")
    for it in range(4):
        A(f"ds_read_b128 {v(96+4*it,4)}, v14 offset:{256*it}")
    for it in range(4):
        A(f"s_waitcnt lgkmcnt({3-it})")
        A(f"s_mov_b32 s37, {hex(8*it*32768)}")
        A(f"buffer_store_dwordx4 {v(96+4*it,4)}, v11, s[28:31], s37 offen")
    if STAMP:
        A("s_waitcnt vmcnt(0)")
        ST.stamp(); ST.stamp(True)
        ST.flush(12, 14, 4)
    A("s_endpgm")
    A.label(f"{name}_done")
    A("s_endpgm")
    return [(name, 200, 100)], [f"; @launch kernel={name} grid=(256,1,1) block=(256,1,1) lds={K1_LDS}"]


K2_LDS = 1024 + 128 * 144
def ln_stats(A, XF, S, tagoff, RS, NM, lanev, wavebase_v, rowaddr_v, maskS):
    Q = S + 8
    T = S + 16
    for r in range(8):
        x01 = v(XF + 4 * r, 2); x23 = v(XF + 4 * r + 2, 2)
        A(f"v_pk_add_f32 {v(T,2)}, {x01}, {x23}")
        A(f"v_pk_mul_f32 {v(T+2,2)}, {x01}, {x01}")
        A(f"v_pk_fma_f32 {v(T+2,2)}, {x23}, {x23}, {v(T+2,2)}")
        A(f"v_add_f32 v{S+r}, v{T}, v{T+1}")
        A(f"v_add_f32 v{Q+r}, v{T+2}, v{T+3}")
    A("s_nop 1")
    for r in range(8):
        A(f"v_permlane32_swap_b32 v{S+r}, v{Q+r}")
    A("s_nop 1")
    for r in range(8):
        A(f"v_add_f32 v{S+r}, v{S+r}, v{Q+r}")
    A("s_nop 1")
    for r in range(4):
        A(f"v_permlane16_swap_b32 v{S+r}, v{S+r+4}")
    A("s_nop 1")
    for r in range(4):
        A(f"v_add_f32 v{S+r}, v{S+r}, v{S+r+4}")
    for ror in (8, 4, 2, 1):
        A("s_nop 1")
        for r in range(4):
            A(f"v_add_f32_dpp v{S+r}, v{S+r}, v{S+r} row_ror:{ror} row_mask:0xf bank_mask:0xf")
    A(f"s_mov_b64 exec, s[{maskS}:{maskS+1}]")
    A(f"ds_write_b128 v{wavebase_v}, {v(S,4)} offset:{tagoff}")
    A("s_mov_b64 exec, -1")
    A("s_waitcnt lgkmcnt(0)")
    A("s_barrier")
    for w in range(4):
        A(f"ds_read_b32 v{S+w}, v{rowaddr_v} offset:{tagoff + w*64}")
        A(f"ds_read_b32 v{S+4+w}, v{rowaddr_v} offset:{tagoff + w*64 + 32}")
    A("s_waitcnt lgkmcnt(0)")
    A(f"v_add_f32 v{S}, v{S}, v{S+1}")
    A(f"v_add_f32 v{S+2}, v{S+2}, v{S+3}")
    A(f"v_add_f32 v{S+4}, v{S+4}, v{S+5}")
    A(f"v_add_f32 v{S+6}, v{S+6}, v{S+7}")
    A(f"v_add_f32 v{S}, v{S}, v{S+2}")
    A(f"v_add_f32 v{S+4}, v{S+4}, v{S+6}")
    A(f"v_mul_f32 v{S}, 0x3a800000, v{S}", "mean")
    A(f"v_mul_f32 v{S+4}, 0x3a800000, v{S+4}", "E[x^2]")
    A(f"v_fma_f32 v{S+4}, -v{S}, v{S}, v{S+4}", "var")
    A(f"v_max_f32 v{S+4}, 0, v{S+4}")
    A(f"v_add_f32 v{S+4}, 0x3727c5ac, v{S+4}", "+1e-5")
    A(f"v_rsq_f32 v{S+4}, v{S+4}")
    A("s_nop 0")
    A(f"v_mul_f32 v{S}, v{S}, v{S+4}")
    A(f"v_sub_f32 v{S}, 0, v{S}", "-mean*rstd")
    A("s_nop 0")
    for r in range(8):
        A(f"v_readlane_b32 s{RS+r}, v{S+4}, {r}")
        A(f"v_readlane_b32 s{RS+8+r}, v{S}, {r}")
    A("s_nop 1")
    for r in range(8):
        A(f"v_mov_b32 v{NM+r}, s{RS+8+r}")

def gen_k2(A):
    names = [f"{PFX}_k2a_kernel", f"{PFX}_k2b_kernel"]
    body = f"{PFX}_k2_body"
    for li, name in enumerate(names):
        kernel_header(A, name)
        A("s_cmp_ge_u32 s2, 256")
        A(f"s_cbranch_scc1 {body}_done")
        A(f"s_load_dwordx2 s[10:11], s[0:1], {KA_WS}")
        if li == 0:
            A(f"s_load_dwordx2 s[4:5], s[0:1], {KA_Q}")
            A("s_waitcnt lgkmcnt(0)")
            srd(A, 12, 4, 4 * MB)
            srd(A, 16, 10, 4 * MB, X1_OFF)
        else:
            A("s_waitcnt lgkmcnt(0)")
            srd(A, 12, 10, 4 * MB, X2_OFF)
            srd(A, 16, 10, 4 * MB, X3_OFF)
        A(f"s_branch {body}")
    A.label(body)
    srd(A, 20, 10, 4 * MB, Y_OFF)
    srd(A, 24, 10, 4 * MB, XN_OFF)
    A("s_lshl_b32 s28, s2, 14")
    A("v_lshlrev_b32 v1, 3, v0")
    A("v_add_u32 v1, s28, v1", "x offset row 0")
    XR, YR = 16, 32
    for r in range(8):
        A(f"s_mov_b32 s30, {r*2048}")
        A(f"buffer_load_dwordx2 {v(XR+2*r,2)}, v1, s[12:15], s30 offen")
    A("s_lshr_b32 s29, s2, 1")
    A("s_lshl_b32 s29, s29, 15")
    A("s_and_b32 s30, s2, 1")
    A("s_lshl_b32 s30, s30, 4")
    A("s_add_u32 s29, s29, s30")
    A("v_lshlrev_b32 v2, 7, v0")
    A("v_add_u32 v2, s29, v2")
    for c in range(4):
        A(f"buffer_load_dwordx4 {v(YR+4*c,4)}, v2, s[20:23], 0 offen offset:{32*c}")
    A("v_and_b32 v3, 63, v0", "lane")
    A("v_lshrrev_b32 v4, 6, v0", "wave")
    A("v_lshrrev_b32 v5, 4, v3", "rho")
    A("v_lshlrev_b32 v5, 4, v5")
    A("v_lshl_add_u32 v5, v4, 6, v5", "stats write addr")
    A("v_and_b32 v6, 7, v3")
    A("v_lshlrev_b32 v6, 2, v6", "row addr")
    A("v_and_b32 v7, 15, v3")
    A("v_cmp_eq_u32 s[32:33], 0, v7")
    XF, YF, S, NM = 48, 80, 112, 140
    RS = 40
    A("s_waitcnt vmcnt(4)")
    for r in range(8):
        for dw in range(2):
            A(f"v_lshlrev_b32 v{XF+4*r+2*dw}, 16, v{XR+2*r+dw}")
            A(f"v_and_b32 v{XF+4*r+2*dw+1}, 0xffff0000, v{XR+2*r+dw}")
    ln_stats(A, XF, S, 0, RS, NM, 3, 5, 6, 32)
    A("s_waitcnt vmcnt(0)")
    for c in range(4):
        for dw in range(4):
            A(f"v_lshlrev_b32 v{YF+4*(2*dw)+c}, 16, v{YR+4*c+dw}")
            A(f"v_and_b32 v{YF+4*(2*dw+1)+c}, 0xffff0000, v{YR+4*c+dw}")
    T = S
    for r in range(8):
        for h in range(2):
            x = v(XF + 4 * r + 2 * h, 2); y = v(YF + 4 * r + 2 * h, 2)
            tt = v(T + 2 * h, 2)
            A(f"v_pk_fma_f32 {tt}, {x}, s[{RS+r}:{RS+r+1}], {v(NM+r,2)} op_sel:[0,0,0] op_sel_hi:[1,0,0]" if (RS + r) % 2 == 0 and (NM + r) % 2 == 0 else
              f"v_pk_fma_f32 {tt}, {x}, s[{RS+r-1}:{RS+r}], {v(NM+r-1,2)} op_sel:[0,1,1] op_sel_hi:[1,1,1]")
            A(f"v_pk_fma_f32 {x}, {tt}, {y}, {x}")
        A(f"v_cvt_pk_bf16_f32 v{XR+2*r}, v{XF+4*r}, v{XF+4*r+1}")
        A(f"v_cvt_pk_bf16_f32 v{XR+2*r+1}, v{XF+4*r+2}, v{XF+4*r+3}")
        A(f"s_mov_b32 s30, {r*2048}")
        A(f"buffer_store_dwordx2 {v(XR+2*r,2)}, v1, s[16:19], s30 offen")
    for r in range(8):
        for dw in range(2):
            A(f"v_lshlrev_b32 v{XF+4*r+2*dw}, 16, v{XR+2*r+dw}")
            A(f"v_and_b32 v{XF+4*r+2*dw+1}, 0xffff0000, v{XR+2*r+dw}")
    ln_stats(A, XF, S, 512, RS, NM, 3, 5, 6, 32)
    A("v_lshrrev_b32 v8, 1, v0")
    A("v_mul_u32_u24 v8, 144, v8")
    A("v_and_b32 v9, 1, v0")
    A("v_lshl_add_u32 v8, v9, 3, v8")
    for r in range(8):
        for h in range(2):
            x = v(XF + 4 * r + 2 * h, 2)
            A(f"v_pk_fma_f32 {x}, {x}, s[{RS+r}:{RS+r+1}], {v(NM+r,2)} op_sel:[0,0,0] op_sel_hi:[1,0,0]" if (RS + r) % 2 == 0 and (NM + r) % 2 == 0 else
              f"v_pk_fma_f32 {x}, {x}, s[{RS+r-1}:{RS+r}], {v(NM+r-1,2)} op_sel:[0,1,1] op_sel_hi:[1,1,1]")
        A(f"v_cvt_pk_bf16_f32 v{YR+2*r}, v{XF+4*r}, v{XF+4*r+1}")
        A(f"v_cvt_pk_bf16_f32 v{YR+2*r+1}, v{XF+4*r+2}, v{XF+4*r+3}")
        A(f"ds_write_b64 v8, {v(YR+2*r,2)} offset:{1024 + 16*r}")
    A("s_waitcnt lgkmcnt(0)")
    A("s_barrier")
    A("v_lshrrev_b32 v8, 3, v0")
    A("v_mul_u32_u24 v9, 144, v8")
    A("v_and_b32 v10, 7, v0")
    A("v_lshl_add_u32 v9, v10, 4, v9")
    for it in range(4):
        A(f"ds_read_b128 {v(XF+4*it,4)}, v9 offset:{1024 + it*32*144}")
    A("v_lshrrev_b32 v11, 3, v8", "ol>>3")
    A("v_lshlrev_b32 v11, 14, v11", "*16KB")
    A("v_bfe_u32 v12, v8, 2, 1")
    A("v_lshl_add_u32 v11, v12, 10, v11")
    A("v_and_b32 v12, 3, v8")
    A("v_lshl_add_u32 v11, v12, 8, v11")
    A("v_lshl_add_u32 v11, v10, 4, v11")
    A("s_lshr_b32 s28, s2, 4", "rt")
    A("s_lshl_b32 s28, s28, 18", "rt*16*16KB")
    A("s_bfe_u32 s29, s2, 0x30001", "rb")
    A("s_lshl_b32 s29, s29, 11")
    A("s_add_u32 s28, s28, s29")
    A("s_and_b32 s29, s2, 1")
    A("s_lshl_b32 s29, s29, 7")
    A("s_add_u32 s28, s28, s29")
    A("v_add_u32 v11, s28, v11")
    for it in range(4):
        A(f"s_waitcnt lgkmcnt({3-it})")
        A(f"s_mov_b32 s30, {it*4*16384}")
        A(f"buffer_store_dwordx4 {v(XF+4*it,4)}, v11, s[24:27], s30 offen")
    A.label(f"{body}_done")
    A("s_endpgm")
    return [(n, 152, 64) for n in names], [f"; @launch kernel={n} grid=(256,1,1) block=(256,1,1) lds={K2_LDS}" for n in names]


NSTAGE = 16
def gemm_loader(A, name, NB, NSLOT):
    SB = 16384 + NB * 2048
    nbw = NB * 2 // 4
    NL = 4 + nbw
    PD = NSLOT - 1
    A("s_sub_u32 s37, s36, 4", "j")
    A("s_lshl_b32 s38, s37, 12", "j*4096")
    A(f"s_mul_i32 s39, s37, {nbw*1024}")
    A("s_add_u32 s28, s28, s38", "A src base for this wave")
    A("s_add_u32 s29, s29, s39", "B src base for this wave")
    A(f"s_add_u32 s39, s39, 16384", "B lds offset in slot")
    A("v_and_b32 v1, 63, v0")
    A("v_lshlrev_b32 v1, 4, v1")
    def issue(st):
        slot = st % NSLOT
        A(f"s_add_u32 m0, s38, {slot*SB}")
        A(f"s_add_u32 s40, s28, {st*16384}")
        for c in range(4):
            A(f"buffer_load_dwordx4 v1, s[12:15], s40 offen offset:{c*1024} lds")
        done = 0
        while done < nbw:
            n = min(4, nbw - done)
            A(f"s_add_u32 m0, s39, {slot*SB + done*1024}")
            A(f"s_add_u32 s40, s29, {st*NB*2048 + done*1024}")
            for c in range(n):
                A(f"buffer_load_dwordx4 v1, s[16:19], s40 offen offset:{c*1024} lds")
            done += n
    for st in range(PD):
        issue(st)
    for i in range(NSTAGE):
        last_issued = min(i + PD - 1, NSTAGE - 1)
        A(f"s_waitcnt vmcnt({NL*(last_issued - i)})")
        A("s_barrier")
        if i + PD < NSTAGE:
            issue(i + PD)
    A("s_endpgm")

def gemm_compute(A, NB, NSLOT, NBW, VA, VB, F0, F1, ACC, swap):
    SB = 16384 + NB * 2048
    A("v_and_b32 v1, 63, v0")
    A("v_lshlrev_b32 v1, 4, v1", "lane*16")
    A("s_lshr_b32 s37, s36, 1", "wr")
    A("s_and_b32 s38, s36, 1", "wc")
    A("s_lshl_b32 s39, s37, 13")
    A(f"s_mul_i32 s40, s38, {NBW*2048}")
    A("s_add_u32 s40, s40, 16384")
    for sl in range(NSLOT):
        A(f"s_add_u32 s41, s39, {sl*SB}")
        A(f"v_add_u32 v{VA+sl}, s41, v1")
        A(f"s_add_u32 s41, s40, {sl*SB}")
        A(f"v_add_u32 v{VB+sl}, s41, v1")
    for i in range(4 * NBW * 4):
        A(f"v_mov_b32 v{ACC+i}, 0")
    def reads(st, kb, F):
        sl = st % NSLOT
        r = []
        for i in range(4):
            r.append(f"ds_read_b128 {v(F+4*i,4)}, v{VA+sl} offset:{i*2048 + kb*1024}")
        for j in range(NBW):
            r.append(f"ds_read_b128 {v(F+16+4*j,4)}, v{VB+sl} offset:{j*2048 + kb*1024}")
        return r
    def mfmas(F):
        m = []
        for j in range(NBW):
            for i in range(4):
                acc = v(ACC + (i * NBW + j) * 4, 4)
                x = v(F + 4 * i, 4); w = v(F + 16 + 4 * j, 4)
                if swap(j):
                    m.append(f"v_mfma_f32_16x16x32_bf16 {acc}, {w}, {x}, {acc}")
                else:
                    m.append(f"v_mfma_f32_16x16x32_bf16 {acc}, {x}, {w}, {acc}")
        return m
    def inter(m, rd):
        k = 0
        for i, x in enumerate(m):
            A(x)
            if k < len(rd):
                A(rd[k]); k += 1
        while k < len(rd):
            A(rd[k]); k += 1
    for st in range(NSTAGE):
        A("s_barrier")
        rd = reads(st, 0, F0)
        if st == 0:
            for x in rd: A(x)
        else:
            inter(mfmas(F1), rd)
        A("s_waitcnt lgkmcnt(0)")
        inter(mfmas(F0), reads(st, 1, F1))
        A("s_waitcnt lgkmcnt(0)")
    for x in mfmas(F1):
        A(x)

K3_LDS = 4 * (16384 + 12 * 2048)
def phi_pair(A, r, T):
    A(f"v_pk_mul_f32 {v(T,2)}, {v(r,2)}, s[44:45]")
    A(f"v_min_f32 v{T}, 0, v{T}")
    A(f"v_min_f32 v{T+1}, 0, v{T+1}")
    A(f"v_exp_f32 v{T}, v{T}")
    A(f"v_exp_f32 v{T+1}, v{T+1}")
    A(f"v_max_f32 v{r}, 0, v{r}")
    A(f"v_max_f32 v{r+1}, 0, v{r+1}")
    A(f"v_pk_add_f32 {v(r,2)}, {v(r,2)}, s[46:47]")
    A(f"v_pk_add_f32 {v(r,2)}, {v(r,2)}, {v(T,2)}")

def gen_k3(A):
    name = f"{PFX}_k3_kernel"
    kernel_header(A, name)
    A("s_cmp_ge_u32 s2, 256")
    A(f"s_cbranch_scc1 {name}_done")
    A(f"s_load_dwordx2 s[10:11], s[0:1], {KA_WS}")
    A("v_lshrrev_b32 v1, 6, v0")
    A("s_and_b32 s4, s2, 7", "x")
    A("s_lshr_b32 s5, s2, 3", "j")
    A("v_readfirstlane_b32 s36, v1")
    A("s_and_b32 s6, s4, 1")
    A("s_lshl_b32 s6, s6, 3")
    A("s_and_b32 s7, s5, 7")
    A("s_add_u32 s6, s6, s7", "rt")
    A("s_lshr_b32 s7, s4, 1")
    A("s_lshl_b32 s7, s7, 2")
    A("s_lshr_b32 s8, s5, 3")
    A("s_add_u32 s7, s7, s8", "ct")
    A("s_lshl_b32 s28, s6, 18", "rt*256KB")
    A(f"s_mul_i32 s29, s7, {16*24576}")
    A("s_waitcnt lgkmcnt(0)")
    srd(A, 12, 10, 4 * MB, XN_OFF)
    srd(A, 16, 10, 6 * MB, WQ_OFF)
    A("s_cmp_lt_u32 s36, 4")
    A(f"s_cbranch_scc1 {name}_comp")
    gemm_loader(A, name, 12, 4)
    A.label(f"{name}_comp")
    VA, VB, F0, F1, ACC = 16, 20, 24, 64, 104
    ST = Stamps(A, 3)
    ST.stamp(True); ST.stamp()
    gemm_compute(A, 12, 4, 6, VA, VB, F0, F1, ACC, lambda j: j < 2)
    ST.stamp()
    srd(A, 20, 10, 4 * MB, PQ_OFF)
    srd(A, 24, 10, KVP_SIZE, KVP_OFF)
    A("s_mov_b32 s44, 0x3fb8aa3b"); A("s_mov_b32 s45, 0x3fb8aa3b")
    A("s_mov_b32 s46, 0x358637bd"); A("s_mov_b32 s47, 0x358637bd")
    T = lambda i, j: ACC + (i * 6 + j) * 4
    A("s_nop 7")
    TMP = 24
    A("s_lshl_b32 s41, s6, 4")
    A("s_add_u32 s41, s41, s7")
    A("s_lshl_b32 s41, s41, 14")
    A("s_lshl_b32 s42, s37, 13")
    A("s_add_u32 s41, s41, s42")
    A("s_lshl_b32 s42, s38, 10")
    A("s_add_u32 s41, s41, s42")
    for i in range(4):
        for j in range(2):
            phi_pair(A, T(i, j), TMP)
            phi_pair(A, T(i, j) + 2, TMP + 4)
        P = 32 + 4 * i
        A(f"v_cvt_pk_bf16_f32 v{P}, v{T(i,0)}, v{T(i,0)+1}")
        A(f"v_cvt_pk_bf16_f32 v{P+1}, v{T(i,0)+2}, v{T(i,0)+3}")
        A(f"v_cvt_pk_bf16_f32 v{P+2}, v{T(i,1)}, v{T(i,1)+1}")
        A(f"v_cvt_pk_bf16_f32 v{P+3}, v{T(i,1)+2}, v{T(i,1)+3}")
        A(f"s_add_u32 s42, s41, {i*2048}")
        A(f"buffer_store_dwordx4 {v(P,4)}, v1, s[20:23], s42 offen")
    PK, VV, ONE, KV = 48, 64, 80, 84
    for i in range(4):
        for j in (2, 3):
            phi_pair(A, T(i, j), TMP)
            phi_pair(A, T(i, j) + 2, TMP + 4)
    for p in range(2):
        for dt in range(2):
            for h in range(2):
                i = 2 * p + h
                A(f"v_cvt_pk_bf16_f32 v{PK+(p*2+dt)*4+2*h}, v{T(i,2+dt)}, v{T(i,2+dt)+1}")
                A(f"v_cvt_pk_bf16_f32 v{PK+(p*2+dt)*4+2*h+1}, v{T(i,2+dt)+2}, v{T(i,2+dt)+3}")
                A(f"v_cvt_pk_bf16_f32 v{VV+(p*2+dt)*4+2*h}, v{T(i,4+dt)}, v{T(i,4+dt)+1}")
                A(f"v_cvt_pk_bf16_f32 v{VV+(p*2+dt)*4+2*h+1}, v{T(i,4+dt)+2}, v{T(i,4+dt)+3}")
    for q in range(4):
        A(f"v_mov_b32 v{ONE+q}, 0x3f803f80")
    A("s_nop 1")
    for p in range(2):
        for dt in range(2):
            for E in range(3):
                tix = E * 2 + dt
                b = v(VV + (p * 2 + E) * 4, 4) if E < 2 else v(ONE, 4)
                c = "0" if p == 0 else v(KV + tix * 4, 4)
                A(f"v_mfma_f32_16x16x32_bf16 {v(KV+tix*4,4)}, {v(PK+(p*2+dt)*4,4)}, {b}, {c}")
    A(f"s_mul_i32 s42, s38, 6144")
    A("v_add_u32 v2, s42, v1")
    A("s_nop 7")
    A("s_cmp_eq_u32 s37, 0")
    A(f"s_cbranch_scc1 {name}_red0")
    for tix in range(6):
        A(f"ds_write_b128 v2, {v(KV+tix*4,4)} offset:{tix*1024}")
    A("s_waitcnt lgkmcnt(0)")
    A("s_barrier")
    A("s_endpgm")
    A.label(f"{name}_red0")
    A("s_barrier")
    for tix in range(6):
        A(f"ds_read_b128 {v(112+tix*4,4)}, v2 offset:{tix*1024}")
    A("s_lshl_b32 s42, s6, 5")
    A("s_lshl_b32 s43, s7, 1")
    A("s_add_u32 s42, s42, s43")
    A("s_add_u32 s42, s42, s38")
    A(f"s_mul_i32 s42, s42, {KVP_STRIDE}")
    A("s_waitcnt lgkmcnt(0)")
    for tix in range(6):
        A(f"v_pk_add_f32 {v(KV+tix*4,2)}, {v(KV+tix*4,2)}, {v(112+tix*4,2)}")
        A(f"v_pk_add_f32 {v(KV+tix*4+2,2)}, {v(KV+tix*4+2,2)}, {v(112+tix*4+2,2)}")
    for tix in range(4):
        A(f"buffer_store_dwordx4 {v(KV+tix*4,4)}, v1, s[24:27], s42 offen offset:{tix*1024}")
    A("v_and_b32 v3, 63, v0")
    A("v_lshrrev_b32 v4, 4, v3")
    A("v_lshlrev_b32 v4, 4, v4")
    A("v_add_u32 v4, 4096, v4")
    A("v_and_b32 v3, 15, v3")
    A("v_cmp_eq_u32 vcc, 0, v3")
    A("s_and_saveexec_b64 s[48:49], vcc")
    for dt in range(2):
        A(f"buffer_store_dwordx4 {v(KV+(4+dt)*4,4)}, v4, s[24:27], s42 offen offset:{dt*64}")
    if STAMP:
        A("s_mov_b64 exec, -1")
        A("s_waitcnt vmcnt(0)")
        ST.stamp(); ST.stamp(True)
        ST.flush(10, 36, 4)
    A.label(f"{name}_done")
    A("s_endpgm")
    return [(name, 208, 100)], [f"; @launch kernel={name} grid=(256,1,1) block=(512,1,1) lds={K3_LDS}"]

def gen_k3b(A):
    name = f"{PFX}_k3b_kernel"
    kernel_header(A, name)
    A("s_cmp_ge_u32 s2, 256")
    A(f"s_cbranch_scc1 {name}_done")
    A(f"s_load_dwordx2 s[10:11], s[0:1], {KA_WS}")
    A("v_lshrrev_b32 v1, 6, v0")
    A("v_and_b32 v2, 63, v0", "lane")
    A("s_and_b32 s4, s2, 31", "head")
    A("v_readfirstlane_b32 s36, v1")
    A("s_lshr_b32 s5, s2, 5", "rp (256-row group)")
    A("v_lshlrev_b32 v1, 4, v2", "lane*16")
    A("s_waitcnt lgkmcnt(0)")
    srd(A, 12, 10, 4 * MB, PQ_OFF)
    srd(A, 16, 10, KVP_SIZE, KVP_OFF)
    srd(A, 20, 10, 4 * MB, O_OFF)
    A("s_lshl_b32 s6, s5, 1")
    A("s_lshr_b32 s7, s36, 1")
    A("s_add_u32 s6, s6, s7", "rt")
    A("s_lshl_b32 s6, s6, 4")
    A("s_lshr_b32 s7, s4, 1")
    A("s_add_u32 s6, s6, s7")
    A("s_lshl_b32 s6, s6, 14")
    A("s_and_b32 s7, s36, 1")
    A("s_lshl_b32 s7, s7, 13")
    A("s_add_u32 s6, s6, s7")
    A("s_and_b32 s7, s4, 1")
    A("s_lshl_b32 s7, s7, 10")
    A("s_add_u32 s6, s6, s7", "s6 = chunk base (i=0)")
    PQ = 16
    for i in range(4):
        A(f"s_add_u32 s7, s6, {i*2048}")
        A(f"buffer_load_dwordx4 {v(PQ+4*i,4)}, v1, s[12:15], s7 offen")
    A(f"s_mul_i32 s8, s4, {KVP_STRIDE}")
    A("s_lshl_b32 s9, s36, 10")
    A("s_add_u32 s9, s9, s8")
    KP = 32
    for rt in range(16):
        A(f"s_add_u32 s7, s9, {rt*32*KVP_STRIDE}")
        A(f"buffer_load_dwordx4 {v(KP+4*rt,4)}, v1, s[16:19], s7 offen")
    A("v_lshrrev_b32 v3, 4, v2", "g")
    A("v_lshlrev_b32 v4, 4, v3")
    A("v_add_u32 v4, 4096, v4")
    A(f"s_mul_i32 s9, s36, {4*32*KVP_STRIDE}")
    A("s_add_u32 s9, s9, s8")
    ZP = 96
    for q in range(4):
        A(f"s_add_u32 s7, s9, {q*32*KVP_STRIDE}")
        for dt in range(2):
            A(f"buffer_load_dwordx4 {v(ZP+(q*2+dt)*4,4)}, v4, s[16:19], s7 offen offset:{dt*64}")
    A("s_waitcnt vmcnt(8)")
    for step in (8, 4, 2, 1):
        for rt in range(step):
            for h in range(2):
                A(f"v_pk_add_f32 {v(KP+4*rt+2*h,2)}, {v(KP+4*rt+2*h,2)}, {v(KP+4*(rt+step)+2*h,2)}")
    A(f"v_cvt_pk_bf16_f32 v{KP+4}, v{KP}, v{KP+1}")
    A(f"v_cvt_pk_bf16_f32 v{KP+5}, v{KP+2}, v{KP+3}")
    A("s_lshr_b32 s7, s36, 1")
    A("s_lshl_b32 s7, s7, 10")
    A("s_and_b32 s9, s36, 1")
    A("s_lshl_b32 s9, s9, 3")
    A("s_add_u32 s7, s7, s9")
    A("v_add_u32 v5, s7, v1")
    A(f"ds_write_b64 v5, {v(KP+4,2)}")
    A("s_waitcnt vmcnt(0)")
    for dt in range(2):
        for h in range(2):
            z = lambda q: v(ZP + (q * 2 + dt) * 4 + 2 * h, 2)
            A(f"v_pk_add_f32 {z(0)}, {z(0)}, {z(1)}")
            A(f"v_pk_add_f32 {z(2)}, {z(2)}, {z(3)}")
            A(f"v_pk_add_f32 {z(0)}, {z(0)}, {z(2)}")
    A("s_lshl_b32 s7, s36, 7")
    A("v_lshlrev_b32 v6, 4, v3")
    A("v_add_u32 v6, s7, v6")
    for dt in range(2):
        A(f"ds_write_b128 v6, {v(ZP+dt*4,4)} offset:{2048 + dt*64}")
    A("s_waitcnt lgkmcnt(0)")
    A("s_barrier")
    KF = 32
    for E in range(2):
        A(f"ds_read_b128 {v(KF+4*E,4)}, v1 offset:{E*1024}")
    A("v_lshlrev_b32 v6, 4, v3")
    for w in range(4):
        for dt in range(2):
            A(f"ds_read_b128 {v(48+(w*2+dt)*4,4)}, v6 offset:{2048 + w*128 + dt*64}")
    A("s_waitcnt lgkmcnt(0)")
    for dt in range(2):
        for h in range(2):
            z = lambda w: v(48 + (w * 2 + dt) * 4 + 2 * h, 2)
            A(f"v_pk_add_f32 {z(0)}, {z(0)}, {z(1)}")
            A(f"v_pk_add_f32 {z(2)}, {z(2)}, {z(3)}")
            A(f"v_pk_add_f32 {z(0)}, {z(0)}, {z(2)}")
    ZF = 40
    A(f"v_cvt_pk_bf16_f32 v{ZF}, v48, v49")
    A(f"v_cvt_pk_bf16_f32 v{ZF+1}, v50, v51")
    A(f"v_cvt_pk_bf16_f32 v{ZF+2}, v52, v53")
    A(f"v_cvt_pk_bf16_f32 v{ZF+3}, v54, v55")
    A("s_nop 1")
    D = 64
    for i in range(4):
        for E in range(2):
            A(f"v_mfma_f32_16x16x32_bf16 {v(D+i*12+E*4,4)}, {v(KF+4*E,4)}, {v(PQ+4*i,4)}, 0")
        A(f"v_mfma_f32_16x16x32_bf16 {v(D+i*12+8,4)}, {v(ZF,4)}, {v(PQ+4*i,4)}, 0")
    A("s_nop 7")
    for i in range(4):
        d = D + i * 12
        A(f"v_add_f32 v{d+8}, 0x358637bd, v{d+8}")
        A(f"v_rcp_f32 v{d+8}, v{d+8}")
        A("s_nop 0")
        for q in range(4):
            A(f"v_pk_mul_f32 {v(d+2*q,2)}, {v(d+2*q,2)}, {v(d+8,2)} op_sel_hi:[1,0]")
        for q in range(4):
            A(f"v_cvt_pk_bf16_f32 v{PQ+4*i+q}, v{d+2*q}, v{d+2*q+1}")
        A(f"s_add_u32 s7, s6, {i*2048}")
        A(f"buffer_store_dwordx4 {v(PQ+4*i,4)}, v1, s[20:23], s7 offen")
    A.label(f"{name}_done")
    A("s_endpgm")
    return [(name, 128, 48)], [f"; @launch kernel={name} grid=(256,1,1) block=(256,1,1) lds=4096"]

K4_NSLOT = 6
K4_LDS = K4_NSLOT * (16384 + 4 * 2048)
def gen_k4(A):
    names = [f"{PFX}_k4a_kernel", f"{PFX}_k4b_kernel"]
    body = f"{PFX}_k4_body"
    for li, name in enumerate(names):
        kernel_header(A, name)
        A("s_cmp_ge_u32 s2, 256")
        A(f"s_cbranch_scc1 {body}_done")
        A(f"s_load_dwordx2 s[10:11], s[0:1], {KA_WS}")
        if li == 0:
            A("s_waitcnt lgkmcnt(0)")
            srd(A, 20, 10, 4 * MB, X1_OFF)
            srd(A, 24, 10, 4 * MB, X2_OFF)
        else:
            A(f"s_load_dwordx2 s[4:5], s[0:1], {KA_OUT}")
            A("s_waitcnt lgkmcnt(0)")
            srd(A, 20, 10, 4 * MB, X3_OFF)
            srd(A, 24, 4, 4 * MB)
        A(f"s_branch {body}")
    A.label(body)
    A("v_lshrrev_b32 v1, 6, v0")
    A("s_and_b32 s4, s2, 7", "x")
    A("s_lshr_b32 s5, s2, 3", "j")
    A("v_readfirstlane_b32 s36, v1")
    A("s_and_b32 s6, s4, 3")
    A("s_lshl_b32 s6, s6, 2")
    A("s_and_b32 s7, s5, 3")
    A("s_add_u32 s6, s6, s7", "rt")
    A("s_lshr_b32 s7, s4, 2")
    A("s_lshl_b32 s7, s7, 3")
    A("s_lshr_b32 s8, s5, 2")
    A("s_add_u32 s7, s7, s8", "ct")
    A("s_lshl_b32 s28, s6, 18")
    A("s_lshl_b32 s29, s7, 17", "ct*16*8KB")
    srd(A, 12, 10, 4 * MB, O_OFF)
    srd(A, 16, 10, 2 * MB, WO_OFF)
    A("s_cmp_lt_u32 s36, 4")
    A(f"s_cbranch_scc1 {body}_comp")
    gemm_loader(A, body, 4, K4_NSLOT)
    A.label(f"{body}_comp")
    VA, VB, F0, F1, ACC, RES = 16, 22, 28, 52, 76, 108
    A("v_and_b32 v2, 63, v0")
    A("v_and_b32 v3, 15, v2")
    A("v_lshrrev_b32 v4, 4, v2", "rho")
    A("v_lshlrev_b32 v5, 11, v3", "row*2048")
    A("v_and_b32 v6, 1, v4")
    A("v_lshl_add_u32 v5, v6, 5, v5")
    A("v_lshrrev_b32 v6, 1, v4")
    A("v_lshl_add_u32 v5, v6, 4, v5")
    A("s_lshr_b32 s42, s36, 1", "wr")
    A("s_and_b32 s43, s36, 1", "wc")
    A("s_lshl_b32 s44, s6, 18", "rt*128*2048")
    A("s_lshl_b32 s45, s42, 17", "wr*64 rows")
    A("s_add_u32 s44, s44, s45")
    A("s_lshl_b32 s45, s7, 7")
    A("s_add_u32 s44, s44, s45")
    A("s_lshl_b32 s45, s43, 6")
    A("s_add_u32 s44, s44, s45", "s44 = tile base offset")
    for i in range(4):
        A(f"s_add_u32 s45, s44, {i*16*2048}")
        A(f"buffer_load_dwordx4 {v(RES+4*i,4)}, v5, s[20:23], s45 offen")
    gemm_compute(A, 4, K4_NSLOT, 2, VA, VB, F0, F1, ACC, lambda j: True)
    A("s_nop 7")
    A("s_waitcnt vmcnt(0)")
    T = lambda i, j: ACC + (i * 2 + j) * 4
    for i in range(4):
        for q in range(4):
            A(f"v_permlane16_swap_b32 v{T(i,0)+q}, v{T(i,1)+q}")
    A("s_nop 1")
    X = 28
    for i in range(4):
        for dw in range(4):
            A(f"v_lshlrev_b32 v{X+2*dw}, 16, v{RES+4*i+dw}")
            A(f"v_and_b32 v{X+2*dw+1}, 0xffff0000, v{RES+4*i+dw}")
        for q in range(4):
            A(f"v_pk_add_f32 {v(T(i,0)+2*q,2)}, {v(T(i,0)+2*q,2)}, {v(X+2*q,2)}")
        for q in range(4):
            A(f"v_cvt_pk_bf16_f32 v{RES+4*i+q}, v{T(i,0)+2*q}, v{T(i,0)+2*q+1}")
        A(f"s_add_u32 s45, s44, {i*16*2048}")
        A(f"buffer_store_dwordx4 {v(RES+4*i,4)}, v5, s[24:27], s45 offen")
    A.label(f"{body}_done")
    A("s_endpgm")
    return [(n, 128, 64) for n in names], [f"; @launch kernel={n} grid=(256,1,1) block=(512,1,1) lds={K4_LDS}" for n in names]

HEADER = open("interleave_layers__ssm_conv_h3__linear_attn_block__prompt.s.ref").read().split("; Override launch")[0]

def build(gens, path):
    A = Asm()
    descs, launches = [], []
    for g in gens:
        d, l = g(A)
        descs += d
        launches += l
    txt = HEADER + "\n".join(launches) + "\n"
    txt += '.amdgcn_target "amdgcn-amd-amdhsa--gfx950"\n'
    txt += A.text()
    txt += '.section .rodata,"a"\n'
    seen = set()
    for (n, vg, sg) in descs:
        if n in seen: continue
        seen.add(n)
        txt += ".p2align 6\n" + kernel_desc(n, vg, sg)
    open(path, "w").write(txt)

def build_all(out):
    A = Asm()
    descs = []
    L = {}
    for key, g in [("k0", gen_k0), ("k1", gen_k1), ("k2", gen_k2), ("k3", gen_k3), ("k3b", gen_k3b), ("k4", gen_k4)]:
        d, l = g(A)
        descs += d
        L[key] = l
    launches = L["k0"] + L["k1"] + [L["k2"][0]] + L["k3"] + L["k3b"] + [L["k4"][0]] + [L["k2"][1]] + L["k3"] + L["k3b"] + [L["k4"][1]]
    finish(A, descs, launches, out)

def finish(A, descs, launches, path):
    txt = HEADER + "\n".join(launches) + "\n"
    txt += '.amdgcn_target "amdgcn-amd-amdhsa--gfx950"\n'
    txt += A.text()
    txt += '.section .rodata,"a"\n'
    seen = set()
    for (n, vg, sg) in descs:
        if n in seen: continue
        seen.add(n)
        txt += ".p2align 6\n" + kernel_desc(n, vg, sg)
    open(path, "w").write(txt)

if __name__ == "__main__":
    out = sys.argv[1] if len(sys.argv) > 1 else "k.s"
    if len(sys.argv) > 2 and sys.argv[2] == "stamp":
        STAMP = True
    A_ = None
    build_all(out)
```
